```python
import torch

def _softmax(x, axis=-1):
    return torch.softmax(x, dim=axis)
def _gelu(x):
    return torch.nn.functional.gelu(x, approximate="tanh")
def _silu(x):
    return torch.nn.functional.silu(x)
def _sigmoid(x):
    return torch.sigmoid(x)
def _layernorm(x, axis=-1, eps=1e-5):
    m = x.mean(dim=axis, keepdim=True)
    v = x.var(dim=axis, keepdim=True, unbiased=False)
    return (x - m) / torch.sqrt(v + eps)
def _scatter_add(tgt, idx, src, axis=0):
    return tgt.clone().index_add_(axis, idx, src)
def _segment_sum(src, seg, n):
    out = torch.zeros((n,) + src.shape[1:], dtype=src.dtype)
    return out.index_add_(0, seg, src)
def _pad(x, pw):
    flat = tuple(v for pair in reversed(pw) for v in pair)
    return torch.nn.functional.pad(x, flat)

kernel_name = 'standalone__kernel_systems_refs_featgraph__graph'

def setup_inputs():

    _w = (lambda a: (lambda t: t.to(torch.bfloat16) if t.is_floating_point() else t)(torch.as_tensor(a)))
    N, deg, D = 25000, 16, 128
    E = N * deg
    scale = D ** -0.5
    src = (lambda lo, hi, *s: torch.randint(lo, hi, s))(0, N, E).to(torch.int64)
    dst = (lambda lo, hi, *s: torch.randint(lo, hi, s))(0, N, E).to(torch.int64)
    return {
        "x": _w((lambda *s: torch.randn(*s, dtype=torch.bfloat16) * 0.8)(N, D)),
        "src": _w(src),
        "dst": _w(dst),
        "w_q": _w((lambda *s: torch.randn(*s, dtype=torch.bfloat16) * 0.8)(D, D) * scale),
        "w_v": _w((lambda *s: torch.randn(*s, dtype=torch.bfloat16) * 0.05)(D, D) * scale),
    }

def reference(x, src, dst, w_q, w_v):
    N, D = x.shape
    xs = x[src]
    xd = x[dst]
    q = xd @ w_q
    logits = torch.einsum('ed,ed->e', xs, q) * (float(D) ** -0.5)
    alpha = _sigmoid(logits)
    msg = alpha[:, None] * (xs @ w_v)
    return _segment_sum(msg, dst, N)
```

```python
import sys
NAME = "standalone__kernel_systems_refs_featgraph__graph"
N, E, D = 25000, 400000, 128
NPB = 98
NBIN = 256
P = 128
CH = 3136
SENT = 0x7FFFFFFF
MARK = 0x7FFFFFFE
CAP = 544
RING = 12288
WV_OFF = 8 * RING
LIST_OFF = WV_OFF + 32768
CNT_OFF = LIST_OFF + 8 * CAP * 4
OVFN_OFF = CNT_OFF + 32
OVFL_OFF = CNT_OFF + 64
LDS2 = OVFL_OFF + 512
LDS1 = 32768 + 1024
opt = dict(prefetch=0)
for a in sys.argv[2:]:
    k, v = a.split("=")
    opt[k] = int(v)

out = []
def e(s=""):
    out.append(s)
def I(s):
    for l in s.strip("\n").split("\n"):
        l = l.strip()
        if l: out.append(("" if l.endswith(":") else "    ") + l)
def srd(d, b, n):
    I(f"s_mov_b32 s{d}, s{b}\ns_and_b32 s{d+1}, s{b+1}, 0xffff\ns_mov_b32 s{d+2}, {n}\ns_mov_b32 s{d+3}, 0x00020000")
def vr(a, n): return f"v[{a}:{a+n-1}]"

hdr = open("cdna_kernels/%s.s.ref" % NAME).read().split("\n")
for l in hdr[:9]: e(l)
G1 = P + opt["prefetch"]
e(f"; @launch kernel=bin_kernel grid=({G1},1,1) block=(1024,1,1) lds={LDS1}")
e(f"; @launch kernel={NAME}_kernel grid=({NBIN},1,1) block=(512,1,1) lds={LDS2}")
e('.amdgcn_target "amdgcn-amd-amdhsa--gfx950"')
e(".text")

def binlocal(dst, bin_, loc, tmp):
    I(f"v_mul_u32_u24 v{bin_}, 21400, v{dst}\nv_lshrrev_b32 v{bin_}, 21, v{bin_}\nv_mul_u32_u24 v{tmp}, {NPB}, v{bin_}\nv_sub_u32 v{loc}, v{dst}, v{tmp}")

e(".globl bin_kernel\n.p2align 8\n.type bin_kernel,@function\nbin_kernel:")
I(f"""
s_cmp_ge_u32 s2, {P}
s_cbranch_scc1 K1_other
s_load_dwordx4 s[4:7], s[0:1], 8
s_load_dwordx2 s[8:9], s[0:1], 56
s_mul_i32 s3, s2, {CH}
v_lshl_add_u32 v1, v0, 2, s3
v_mov_b32 v4, {SENT}
v_mov_b32 v5, v4
v_mov_b32 v6, v4
v_mov_b32 v7, v4
v_lshlrev_b32 v2, 4, v0
v_mov_b32 v3, 0
v_lshlrev_b32 v8, 2, v0
s_waitcnt lgkmcnt(0)
""")
srd(12, 4, E*4); srd(16, 6, E*4); srd(20, 8, NBIN*P*128)
I(f"""
s_mov_b32 s24, {E}
v_cmp_gt_u32 vcc, {CH//4}, v0
v_cmp_gt_u32 s[26:27], s24, v1
v_lshlrev_b32 v1, 2, v1
s_and_b64 s[26:27], s[26:27], vcc
s_mov_b64 exec, s[26:27]
s_cbranch_execz K1_noload
buffer_load_dwordx4 v[12:15], v1, s[16:19], 0 offen
buffer_load_dwordx4 v[16:19], v1, s[12:15], 0 offen
K1_noload:
s_mov_b64 exec, -1
ds_write_b128 v2, v[4:7]
ds_write_b128 v2, v[4:7] offset:16384
v_cmp_gt_u32 vcc, 256, v0
s_and_saveexec_b64 s[28:29], vcc
ds_write_b32 v8, v3 offset:32768
s_mov_b64 exec, -1
v_mov_b32 v9, 1
s_waitcnt lgkmcnt(0)
s_barrier
s_mov_b64 exec, s[26:27]
s_cbranch_execz K1_nobin
s_waitcnt vmcnt(1)
""")
for j in range(4):
    binlocal(12+j, 20+j, 24+j, 28)
    I(f"v_lshlrev_b32 v28, 2, v{20+j}\nds_add_rtn_u32 v{32+j}, v28, v9 offset:32768")
I("s_waitcnt vmcnt(0)")
for j in range(4):
    I(f"v_lshl_or_b32 v{24+j}, v{16+j}, 8, v{24+j}\nv_lshlrev_b32 v{20+j}, 7, v{20+j}")
for j in range(4):
    I(f"""
s_waitcnt lgkmcnt({3-j if j<3 else 0})
v_lshl_add_u32 v{20+j}, v{32+j}, 2, v{20+j}
v_cmpx_gt_u32 vcc, 32, v{32+j}
ds_write_b32 v{20+j}, v{24+j}
s_mov_b64 exec, s[26:27]
""") if j == 3 else I(f"""
s_waitcnt lgkmcnt(3)
v_lshl_add_u32 v{20+j}, v{32+j}, 2, v{20+j}
v_cmpx_gt_u32 vcc, 32, v{32+j}
ds_write_b32 v{20+j}, v{24+j}
s_mov_b64 exec, s[26:27]
""")
I(f"""
K1_nobin:
s_mov_b64 exec, -1
v_lshrrev_b32 v10, 3, v0
v_and_b32 v11, 7, v0
v_lshlrev_b32 v12, 2, v10
v_lshlrev_b32 v13, 14, v10
v_lshl_add_u32 v13, v11, 4, v13
s_lshl_b32 s3, s2, 7
s_add_u32 s4, s3, {128*16384}
v_cmp_eq_u32 vcc, 0, v11
v_mov_b32 v14, {MARK}
s_waitcnt lgkmcnt(0)
s_barrier
v_cndmask_b32 v14, v4, v14, vcc
ds_read_b128 v[16:19], v2
ds_read_b32 v24, v12 offset:32768
ds_read_b128 v[20:23], v2 offset:16384
ds_read_b32 v25, v12 offset:{32768+512}
s_waitcnt lgkmcnt(2)
v_cmp_lt_u32 vcc, 32, v24
s_nop 1
v_cndmask_b32 v16, v16, v14, vcc
v_cndmask_b32 v17, v17, v4, vcc
v_cndmask_b32 v18, v18, v4, vcc
v_cndmask_b32 v19, v19, v4, vcc
buffer_store_dwordx4 v[16:19], v13, s[20:23], s3 offen
s_waitcnt lgkmcnt(0)
v_cmp_lt_u32 vcc, 32, v25
s_nop 1
v_cndmask_b32 v20, v20, v14, vcc
v_cndmask_b32 v21, v21, v4, vcc
v_cndmask_b32 v22, v22, v4, vcc
v_cndmask_b32 v23, v23, v4, vcc
buffer_store_dwordx4 v[20:23], v13, s[20:23], s4 offen
s_endpgm
K1_other:
""")
if opt["prefetch"]:
    npf = opt["prefetch"]
    per = -(-(N*256) // (npf*1024*16))
    I(f"""
s_cmp_ge_u32 s2, {P+npf}
s_cbranch_scc1 K1_end
s_load_dwordx2 s[4:5], s[0:1], 0
s_sub_u32 s3, s2, {P}
s_mul_i32 s3, s3, {per*16384}
v_lshl_add_u32 v1, v0, 4, s3
s_waitcnt lgkmcnt(0)
""")
    srd(8, 4, N*256)
    for i in range(per):
        I(f"s_mov_b32 s3, {i*16384}\nbuffer_load_dwordx4 v[{4+4*i}:{7+4*i}], v1, s[8:11], s3 offen")
    I("s_waitcnt vmcnt(0)")
I("K1_end:\ns_endpgm")

ENT, RNK, LQ, QF, OA, XA, XV, SS, PP, DA = 8, 16, 24, 48, 64, 96, 128, 160, 168, 172
AS, AV, SW, NODEC, LADDR, ROWOFF, ONE, LCUR = 180, 184, 192, 196, 197, 198, 199, 200
NV2 = 204
MSK = 40
e(f".globl {NAME}_kernel\n.p2align 8\n.type {NAME}_kernel,@function\n{NAME}_kernel:")
I(f"""
s_cmp_ge_u32 s2, {NBIN}
s_cbranch_scc1 K2_end
s_load_dwordx8 s[60:67], s[0:1], 0
s_load_dwordx4 s[68:71], s[0:1], 32
s_load_dwordx2 s[72:73], s[0:1], 56
v_lshrrev_b32 v1, 6, v0
v_and_b32 v2, 63, v0
v_readfirstlane_b32 s3, v1
v_lshrrev_b32 v3, 4, v2
v_and_b32 v4, 15, v2
s_mul_i32 s4, s2, {NPB}
s_mul_i32 s5, s3, {RING}
s_lshl_b32 s6, s3, 12
s_mov_b32 s36, 0xffffff00
v_lshl_add_u32 v{NODEC}, v4, 3, s3
v_add_u32 v5, s4, v{NODEC}
v_lshlrev_b32 v5, 8, v5
v_lshl_add_u32 v{ROWOFF}, v3, 6, v5
v_xor_b32 v5, v4, v3
v_lshlrev_b32 v5, 4, v5
v_lshl_add_u32 v5, v3, 8, v5
v_add_u32 v5, s6, v5
v_lshlrev_b32 v6, 4, v0
s_lshl_b32 s7, s2, 14
s_add_u32 s37, s7, 8192
s_waitcnt lgkmcnt(0)
""")
srd(8, 60, N*256); srd(20, 66, 32768); srd(24, 68, 32768); srd(12, 72, NBIN*P*128)
I(f"""
s_mov_b32 m0, s6
s_add_u32 s38, s6, {WV_OFF}
""")
for i in range(4): I(f"buffer_load_dwordx4 v5, s[20:23], 0 offen offset:{1024*i} lds")
for ks in range(4): I(f"buffer_load_dwordx4 {vr(LQ+4*ks,4)}, v{ROWOFF}, s[8:11], 0 offen offset:{16*ks}")
I("s_mov_b32 m0, s38\ns_nop 0")
for i in range(4): I(f"buffer_load_dwordx4 v5, s[24:27], 0 offen offset:{1024*i} lds")
I(f"""
buffer_load_dwordx4 {vr(ENT,4)}, v6, s[12:15], s7 offen
buffer_load_dwordx4 {vr(ENT+4,4)}, v6, s[12:15], s37 offen
""")
srd(16, 70, N*256); srd(28, 62, E*4); srd(32, 64, E*4)
I(f"""
v_mov_b32 v7, 0
v_lshlrev_b32 v6, 2, v0
v_add_u32 v6, {CNT_OFF}, v6
v_cmp_gt_u32 vcc, 16, v0
s_and_saveexec_b64 s[74:75], vcc
ds_write_b32 v6, v7
s_mov_b64 exec, -1
v_mov_b32 v{ONE}, 1
v_and_b32 v5, 7, v4
v_lshlrev_b32 v5, 1, v5
v_lshrrev_b32 v6, 3, v4
v_or_b32 v5, v5, v6
v_and_b32 v6, 3, v4
v_lshlrev_b32 v6, 2, v6
v_lshrrev_b32 v7, 2, v4
v_or_b32 v6, v6, v7
v_lshlrev_b32 v7, 2, v3
v_xor_b32 v7, v7, v5
v_lshlrev_b32 v7, 4, v7
v_lshl_add_u32 v7, v6, 8, v7
v_add_u32 v{AS}, s5, v7
""")
for ks in range(1, 4): I(f"v_xor_b32 v{AS+ks}, {16*ks}, v{AS}")
I(f"""
v_bfe_u32 v6, v2, 2, 2
v_and_b32 v7, 3, v2
v_lshl_add_u32 v5, v3, 2, v6
v_and_b32 v{DA}, 7, v5
v_lshlrev_b32 v{DA}, 1, v{DA}
v_lshrrev_b32 v5, 3, v5
v_or_b32 v5, v5, v{DA}
v_lshrrev_b32 v{DA}, 1, v7
v_xor_b32 v5, v5, v{DA}
v_lshlrev_b32 v5, 4, v5
v_and_b32 v{DA}, 1, v7
v_lshl_add_u32 v5, v{DA}, 3, v5
v_lshl_add_u32 v{DA}, v6, 2, v3
v_lshl_add_u32 v5, v{DA}, 8, v5
v_add_u32 v{AV}, s5, v5
""")
for ft in range(1, 8): I(f"v_xor_b32 v{AV+ft}, {32*ft}, v{AV}")
for i in range(4):
    I(f"""
v_lshl_add_u32 v5, v3, 2, {i}
v_and_b32 v{DA}, 7, v5
v_lshlrev_b32 v{DA}, 1, v{DA}
v_lshrrev_b32 v5, 3, v5
v_or_b32 v5, v5, v{DA}
v_xor_b32 v5, v5, v4
v_lshlrev_b32 v{SW+i}, 4, v5
""")
I(f"""
s_mul_i32 s39, s3, {CAP*4}
s_add_u32 s39, s39, {LIST_OFF}
v_lshl_add_u32 v{LADDR}, v3, 4, s39
v_lshl_add_u32 v5, v3, 5, v6
v_lshlrev_b32 v5, 8, v5
v_lshl_add_u32 v5, v7, 6, v5
v_lshl_add_u32 v{DA}, v6, 4, v5
""")
for u in range(1, 4): I(f"v_xor_b32 v{DA+u}, {16*u}, v{DA}")
I("s_waitcnt vmcnt(2) lgkmcnt(0)\ns_barrier")
for hb in range(2):
    for tt in range(4):
        t = 4*hb + tt
        for ks in range(4):
            for h in range(2):
                I(f"ds_read_b64_tr_b16 {vr(XA+16*tt+4*ks+2*h,2)}, v{DA+(t>>1)} offset:{(8*ks+4*h)*256+(t&1)*8}")
    for tt in range(4):
        t = 4*hb + tt
        I(f"s_waitcnt lgkmcnt({min(15, 8*(3-tt))})")
        for ks in range(4):
            c = "0" if ks == 0 else vr(OA+4*t,4)
            I(f"v_mfma_f32_16x16x32_bf16 {vr(OA+4*t,4)}, {vr(XA+16*tt+4*ks,4)}, {vr(LQ+4*ks,4)}, {c}")
import struct
cfold = -(128 ** -0.5) * 1.4426950408889634
cbits = struct.unpack("<I", struct.pack("<f", cfold))[0]
I(f"s_mov_b32 s76, {cbits:#x}\ns_nop 7")
for i in range(32): I(f"v_mul_f32 v{OA+i}, s76, v{OA+i}")
for i in range(16): I(f"v_cvt_pk_bf16_f32 v{QF+i}, v{OA+2*i}, v{OA+2*i+1}")
for i in range(32): I(f"v_mov_b32 v{OA+i}, 0")
I(f"""
s_mov_b32 s77, 0
s_mov_b32 s78, 0x01000000
s_mov_b32 s79, {MARK}
s_waitcnt vmcnt(0)
v_lshrrev_b32 v5, 3, v0
v_mov_b32 v6, {OVFN_OFF}
""")
for k, j in enumerate((0, 4)):
    I(f"""
v_cmp_eq_u32 vcc, s79, v{ENT+j}
s_and_saveexec_b64 s[74:75], vcc
s_cbranch_execz K2_nomark{k}
ds_add_rtn_u32 v7, v6, v{ONE}
v_add_u32 v1, {64*k}, v5
s_waitcnt lgkmcnt(0)
v_lshlrev_b32 v7, 2, v7
v_add_u32 v7, {OVFL_OFF}, v7
ds_write_b32 v7, v1
K2_nomark{k}:
s_mov_b64 exec, -1
""")
I("K2_round:")
for j in range(8):
    I(f"""
v_and_b32 v{DA+j}, 7, v{ENT+j}
v_lshlrev_b32 v5, 2, v{DA+j}
v_add_u32 v5, {CNT_OFF}, v5
v_mov_b32 v{RNK+j}, -1
v_cmpx_gt_u32 vcc, s78, v{ENT+j}
ds_add_rtn_u32 v{RNK+j}, v5, v{ONE}
s_mov_b64 exec, -1
""")
I(f"s_mov_b32 s80, 0\ns_mov_b32 s81, {CAP}\ns_waitcnt lgkmcnt(0)\nK2_sub:")
for j in range(8):
    I(f"""
v_and_b32 v5, 7, v{ENT+j}
v_subrev_u32 v6, s80, v{RNK+j}
v_mad_u32_u24 v5, v5, s81, v6
v_lshlrev_b32 v5, 2, v5
v_add_u32 v5, {LIST_OFF}, v5
v_cmpx_gt_u32 vcc, s81, v6
ds_write_b32 v5, v{ENT+j}
s_mov_b64 exec, -1
""")
I(f"""
v_and_b32 v5, 15, v0
v_lshlrev_b32 v5, 2, v5
v_add_u32 v5, {CNT_OFF}, v5
s_waitcnt lgkmcnt(0)
s_barrier
ds_read_b32 v5, v5
s_waitcnt lgkmcnt(0)
s_nop 0
v_readlane_b32 s82, v5, s3
v_readlane_b32 s83, v5, 0
""")
for k in range(1, 8): I(f"v_readlane_b32 s84, v5, {k}\ns_max_u32 s83, s83, s84")
I(f"""
v_readlane_b32 s85, v5, 8
s_sub_u32 s82, s82, s80
s_cselect_b32 s82, 0, s82
s_min_u32 s82, s82, {CAP}
s_add_u32 s84, s82, 31
s_lshr_b32 s86, s84, 5
s_cmp_eq_u32 s86, 0
s_cbranch_scc1 K2_done
v_and_b32 v5, 31, v0
v_add_u32 v5, s82, v5
s_lshl_b32 s84, s86, 5
v_lshl_add_u32 v6, v5, 2, s39
v_mov_b32 v7, {SENT}
v_cmpx_gt_u32 vcc, s84, v5
ds_write_b32 v6, v7
s_mov_b64 exec, -1
v_mov_b32 v{LCUR}, v{LADDR}
ds_read_b128 {vr(LQ,4)}, v{LCUR}
ds_read_b128 {vr(LQ+4,4)}, v{LCUR} offset:64
ds_read_b128 {vr(LQ+8,4)}, v{LCUR} offset:128
""")
def dma(q, slot):
    I(f"s_add_u32 m0, s5, {slot*4096}")
    for i in range(4):
        I(f"v_and_or_b32 v{DA+i}, v{LQ+4*q+i}, s36, v{SW+i}")
    for i in range(4):
        I(f"buffer_load_dwordx4 v{DA+i}, s[8:11], 0 offen lds")
        if i < 3: I("s_add_u32 m0, m0, 1024\ns_nop 0")
I("s_waitcnt lgkmcnt(1)")
dma(0, 0); dma(1, 1)
I("s_waitcnt lgkmcnt(0)\ns_cmp_lt_u32 s86, 2\ns_cbranch_scc1 K2_it0")
dma(2, 2)
for j in range(3):
    sa, sb = (2*j) % 3, (2*j+1) % 3
    qa, qb = 2*j, 2*j+1
    qn1, qn2 = (2*j+3) % 6, (2*j+4) % 6
    I(f"""
K2_it{j}:
s_cmp_lt_u32 s86, 2
s_cbranch_scc1 K2_w0_{j}
s_waitcnt vmcnt(4)
s_branch K2_w1_{j}
K2_w0_{j}:
s_waitcnt vmcnt(0)
K2_w1_{j}:
""")
    for T, sl in ((0, sa), (1, sb)):
        for ks in range(4):
            I(f"ds_read_b128 {vr(XA+16*T+4*ks,4)}, v{AS+ks} offset:{sl*4096}")
    I(f"ds_read_b128 {vr(LQ+4*qn1,4)}, v{LCUR} offset:{(2*j+3)*64}")
    I(f"ds_read_b128 {vr(LQ+4*qn2,4)}, v{LCUR} offset:{(2*j+4)*64}")
    for T, q in ((0, qa), (1, qb)):
        for r in range(4):
            I(f"v_cmp_eq_u32_sdwa s[{MSK+8*T+2*r}:{MSK+8*T+2*r+1}], v{LQ+4*q+r}, v{NODEC} src0_sel:BYTE_0 src1_sel:DWORD")
    for ft in range(4):
        for T, sl in ((0, sa), (1, sb)):
            I(f"ds_read_b64_tr_b16 {vr(XV+4*ft+2*T,2)}, v{AV+ft} offset:{sl*4096}")
    I("s_waitcnt lgkmcnt(10)")
    for ks in range(4):
        for T in range(2):
            c = "0" if ks == 0 else vr(SS+4*T,4)
            I(f"v_mfma_f32_16x16x32_bf16 {vr(SS+4*T,4)}, {vr(XA+16*T+4*ks,4)}, {vr(QF+4*ks,4)}, {c}")
        if ks < 2:
            for ft in range(4+2*ks, 6+2*ks):
                for T, sl in ((0, sa), (1, sb)):
                    I(f"ds_read_b64_tr_b16 {vr(XV+4*ft+2*T,2)}, v{AV+ft} offset:{sl*4096}")
    I(f"s_waitcnt lgkmcnt(0)\ns_cmp_lt_u32 s86, 2\ns_cbranch_scc1 K2_nd_{j}")
    dma(qn1, sa)
    I(f"s_cmp_lt_u32 s86, 3\ns_cbranch_scc1 K2_nd_{j}")
    dma(qn2, sb)
    I(f"K2_nd_{j}:\ns_nop 4")
    for i in range(8): I(f"v_exp_f32 v{SS+i}, v{SS+i}")
    for i in range(8): I(f"v_add_f32 v{SS+i}, 1.0, v{SS+i}")
    for i in range(8): I(f"v_rcp_f32 v{SS+i}, v{SS+i}")
    for i in range(8): I(f"v_cndmask_b32 v{SS+i}, 0, v{SS+i}, s[{MSK+2*i}:{MSK+2*i+1}]")
    for i in range(4): I(f"v_cvt_pk_bf16_f32 v{PP+i}, v{SS+2*i}, v{SS+2*i+1}")
    I("s_nop 1")
    for ft in range(8):
        I(f"v_mfma_f32_16x16x32_bf16 {vr(OA+4*ft,4)}, {vr(XV+4*ft,4)}, {vr(PP,4)}, {vr(OA+4*ft,4)}")
    I(f"s_sub_u32 s86, s86, 1\ns_cmp_eq_u32 s86, 0\ns_cbranch_scc1 K2_done")
I(f"v_add_u32 v{LCUR}, 384, v{LCUR}\ns_branch K2_it0")
I(f"""
K2_done:
s_add_u32 s80, s80, {CAP}
s_cmp_lt_u32 s80, s83
s_cbranch_scc0 K2_nosub
s_barrier
s_branch K2_sub
K2_nosub:
s_cmp_lt_u32 s77, s85
s_cbranch_scc0 K2_epi
s_barrier
v_mov_b32 v7, 0
v_lshlrev_b32 v6, 2, v0
v_add_u32 v6, {CNT_OFF}, v6
v_cmp_gt_u32 vcc, 8, v0
s_and_saveexec_b64 s[74:75], vcc
ds_write_b32 v6, v7
s_mov_b64 exec, -1
s_lshl_b32 s84, s77, 2
s_add_u32 s84, s84, {OVFL_OFF}
v_mov_b32 v5, s84
ds_read_b32 v5, v5
s_add_u32 s77, s77, 1
s_waitcnt lgkmcnt(0)
s_nop 0
v_readfirstlane_b32 s84, v5
s_mul_i32 s84, s84, {CH}
v_lshl_add_u32 v1, v0, 2, s84
v_lshlrev_b32 v2, 2, v1
s_movk_i32 s87, 0x2000
buffer_load_dwordx4 {vr(XA,4)}, v2, s[32:35], 0 offen
buffer_load_dwordx4 {vr(XA+4,4)}, v2, s[32:35], s87 offen
buffer_load_dwordx4 {vr(XA+8,4)}, v2, s[28:31], 0 offen
buffer_load_dwordx4 {vr(XA+12,4)}, v2, s[28:31], s87 offen
s_mov_b32 s88, {E}
v_cmp_gt_u32 s[90:91], s88, v1
v_add_u32 v1, 2048, v1
v_cmp_gt_u32 s[92:93], s88, v1
v_cmp_gt_u32 vcc, {(CH-2048)//4}, v0
s_and_b64 s[92:93], s[92:93], vcc
v_mov_b32 v3, {SENT}
s_waitcnt vmcnt(0)
""")
for j in range(8):
    binlocal(XA+j, 5, 6, 7)
    m = "s[90:91]" if j < 4 else "s[92:93]"
    I(f"""
v_lshl_or_b32 v6, v{XA+8+j}, 8, v6
v_cmp_eq_u32 vcc, s2, v5
s_and_b64 vcc, vcc, {m}
s_nop 1
v_cndmask_b32 v{ENT+j}, v3, v6, vcc
""")
I(f"""
s_barrier
s_branch K2_round
K2_epi:
v_and_b32 v2, 63, v0
v_lshrrev_b32 v3, 4, v2
v_bfe_u32 v6, v2, 2, 2
v_and_b32 v7, 3, v2
v_lshl_add_u32 v5, v3, 2, v6
v_lshlrev_b32 v5, 8, v5
v_lshl_add_u32 v5, v7, 6, v5
v_lshl_add_u32 v5, v6, 4, v5
v_add_u32 v{DA}, {WV_OFF}, v5
""")
for u in range(1, 4): I(f"v_xor_b32 v{DA+u}, {16*u}, v{DA}")
def wvread(hb):
    for tt in range(4):
        t = 4*hb + tt
        for s in range(4):
            for h in range(2):
                I(f"ds_read_b64_tr_b16 {vr(XA+16*tt+4*s+2*h,2)}, v{DA+(t>>1)} offset:{(32*s+16*h)*256+(t&1)*8}")
wvread(0)
for i in range(16): I(f"v_cvt_pk_bf16_f32 v{QF+i}, v{OA+2*i}, v{OA+2*i+1}")
for hb in range(2):
    if hb: wvread(1)
    for tt in range(4):
        t = 4*hb + tt
        I(f"s_waitcnt lgkmcnt({min(15, 8*(3-tt))})")
        for s in range(4):
            c = "0" if s == 0 else vr(OA+4*t,4)
            I(f"v_mfma_f32_16x16x32_bf16 {vr(OA+4*t,4)}, {vr(XA+16*tt+4*s,4)}, {vr(QF+4*s,4)}, {c}")
I(f"v_cmp_gt_u32 vcc, {NPB}, v{NODEC}\ns_nop 7")
for i in range(16): I(f"v_cvt_pk_bf16_f32 v{LQ+i}, v{OA+2*i}, v{OA+2*i+1}")
I("s_and_saveexec_b64 s[74:75], vcc")
for u in range(4): I(f"buffer_store_dwordx4 {vr(LQ+4*u,4)}, v{ROWOFF}, s[16:19], 0 offen offset:{16*u}")
I("K2_end:\ns_endpgm")

e('.section .rodata,"a"')
for nm, nv in (("bin_kernel", 64), (NAME+"_kernel", NV2)):
    e(f""".p2align 6
.amdhsa_kernel {nm}
  .amdhsa_next_free_vgpr {nv}
  .amdhsa_next_free_sgpr 96
  .amdhsa_accum_offset {(nv+3)//4*4}
  .amdhsa_group_segment_fixed_size 0
  .amdhsa_kernarg_size 64
  .amdhsa_user_sgpr_count 2
  .amdhsa_user_sgpr_kernarg_segment_ptr 1
  .amdhsa_system_sgpr_workgroup_id_x 1
.end_amdhsa_kernel""")
open(sys.argv[1], "w").write("\n".join(out) + "\n")
```

```python
import sys
NAME = "standalone__kernel_systems_refs_featgraph__graph"
N, E, D = 25000, 400000, 128
NPB = 98
NBIN = 256
P = 128
CH = 3136
SENT = 0x7FFFFFFF
MARK = 0x7FFFFFFE
CAP = 544
RING = 12288
WV_OFF = 8 * RING
LIST_OFF = WV_OFF + 32768
CNT_OFF = LIST_OFF + 8 * CAP * 4
OVFN_OFF = CNT_OFF + 32
OVFL_OFF = CNT_OFF + 64
LDS2 = OVFL_OFF + 512
LDS1 = 32768 + 1024
opt = dict(prefetch=0, extra=0, stamps=0)
for a in sys.argv[2:]:
    k, v = a.split("=")
    opt[k] = int(v)

out = []
def e(s=""):
    out.append(s)
def I(s):
    for l in s.strip("\n").split("\n"):
        l = l.strip()
        if l: out.append(("" if l.endswith(":") else "    ") + l)
def srd(d, b, n):
    I(f"s_mov_b32 s{d}, s{b}\ns_and_b32 s{d+1}, s{b+1}, 0xffff\ns_mov_b32 s{d+2}, {n}\ns_mov_b32 s{d+3}, 0x00020000")
def vr(a, n): return f"v[{a}:{a+n-1}]"

hdr = open("cdna_kernels/%s.s.ref" % NAME).read().split("\n")
for l in hdr[:9]: e(l)
G1 = P + opt["prefetch"]
e(f"; @launch kernel=bin_kernel grid=({G1},1,1) block=(1024,1,1) lds={LDS1}")
e(f"; @launch kernel={NAME}_kernel grid=({NBIN},1,1) block=(512,1,1) lds={LDS2}")
for _i in range(opt["extra"]): e("; @launch kernel=nop_kernel grid=(1,1,1) block=(64,1,1) lds=0")
e('.amdgcn_target "amdgcn-amd-amdhsa--gfx950"')
e(".text")

def binlocal(dst, bin_, loc, tmp):
    I(f"v_mul_u32_u24 v{bin_}, 21400, v{dst}\nv_lshrrev_b32 v{bin_}, 21, v{bin_}\nv_mul_u32_u24 v{tmp}, {NPB}, v{bin_}\nv_sub_u32 v{loc}, v{dst}, v{tmp}")

e(".globl bin_kernel\n.p2align 8\n.type bin_kernel,@function\nbin_kernel:")
I(f"""
s_cmp_ge_u32 s2, {P}
s_cbranch_scc1 K1_other
s_load_dwordx4 s[4:7], s[0:1], 8
s_load_dwordx2 s[8:9], s[0:1], 56
s_mul_i32 s3, s2, {CH}
v_lshl_add_u32 v1, v0, 2, s3
v_mov_b32 v4, {SENT}
v_mov_b32 v5, v4
v_mov_b32 v6, v4
v_mov_b32 v7, v4
v_lshlrev_b32 v2, 4, v0
v_mov_b32 v3, 0
v_lshlrev_b32 v8, 2, v0
s_waitcnt lgkmcnt(0)
""")
srd(12, 4, E*4); srd(16, 6, E*4); srd(20, 8, NBIN*P*128)
I(f"""
s_mov_b32 s24, {E}
v_cmp_gt_u32 vcc, {CH//4}, v0
v_cmp_gt_u32 s[26:27], s24, v1
v_lshlrev_b32 v1, 2, v1
s_and_b64 s[26:27], s[26:27], vcc
s_mov_b64 exec, s[26:27]
s_cbranch_execz K1_noload
buffer_load_dwordx4 v[12:15], v1, s[16:19], 0 offen
buffer_load_dwordx4 v[16:19], v1, s[12:15], 0 offen
K1_noload:
s_mov_b64 exec, -1
ds_write_b128 v2, v[4:7]
ds_write_b128 v2, v[4:7] offset:16384
v_cmp_gt_u32 vcc, 256, v0
s_and_saveexec_b64 s[28:29], vcc
ds_write_b32 v8, v3 offset:32768
s_mov_b64 exec, -1
v_mov_b32 v9, 1
s_waitcnt lgkmcnt(0)
s_barrier
s_mov_b64 exec, s[26:27]
s_cbranch_execz K1_nobin
s_waitcnt vmcnt(1)
""")
for j in range(4):
    binlocal(12+j, 20+j, 24+j, 28)
    I(f"v_lshlrev_b32 v28, 2, v{20+j}\nds_add_rtn_u32 v{32+j}, v28, v9 offset:32768")
I("s_waitcnt vmcnt(0)")
for j in range(4):
    I(f"v_lshl_or_b32 v{24+j}, v{16+j}, 8, v{24+j}\nv_lshlrev_b32 v{20+j}, 7, v{20+j}")
for j in range(4):
    I(f"""
s_waitcnt lgkmcnt({3-j if j<3 else 0})
v_lshl_add_u32 v{20+j}, v{32+j}, 2, v{20+j}
v_cmpx_gt_u32 vcc, 32, v{32+j}
ds_write_b32 v{20+j}, v{24+j}
s_mov_b64 exec, s[26:27]
""") if j == 3 else I(f"""
s_waitcnt lgkmcnt(3)
v_lshl_add_u32 v{20+j}, v{32+j}, 2, v{20+j}
v_cmpx_gt_u32 vcc, 32, v{32+j}
ds_write_b32 v{20+j}, v{24+j}
s_mov_b64 exec, s[26:27]
""")
I(f"""
K1_nobin:
s_mov_b64 exec, -1
v_lshrrev_b32 v10, 3, v0
v_and_b32 v11, 7, v0
v_lshlrev_b32 v12, 2, v10
v_lshlrev_b32 v13, 14, v10
v_lshl_add_u32 v13, v11, 4, v13
s_lshl_b32 s3, s2, 7
s_add_u32 s4, s3, {128*16384}
v_cmp_eq_u32 vcc, 0, v11
v_mov_b32 v14, {MARK}
s_waitcnt lgkmcnt(0)
s_barrier
v_cndmask_b32 v14, v4, v14, vcc
ds_read_b128 v[16:19], v2
ds_read_b32 v24, v12 offset:32768
ds_read_b128 v[20:23], v2 offset:16384
ds_read_b32 v25, v12 offset:{32768+512}
s_waitcnt lgkmcnt(2)
v_cmp_lt_u32 vcc, 32, v24
s_nop 1
v_cndmask_b32 v16, v16, v14, vcc
v_cndmask_b32 v17, v17, v4, vcc
v_cndmask_b32 v18, v18, v4, vcc
v_cndmask_b32 v19, v19, v4, vcc
buffer_store_dwordx4 v[16:19], v13, s[20:23], s3 offen
s_waitcnt lgkmcnt(0)
v_cmp_lt_u32 vcc, 32, v25
s_nop 1
v_cndmask_b32 v20, v20, v14, vcc
v_cndmask_b32 v21, v21, v4, vcc
v_cndmask_b32 v22, v22, v4, vcc
v_cndmask_b32 v23, v23, v4, vcc
buffer_store_dwordx4 v[20:23], v13, s[20:23], s4 offen
s_endpgm
K1_other:
""")
if opt["prefetch"]:
    npf = opt["prefetch"]
    per = -(-(N*256) // (npf*1024*16))
    I(f"""
s_cmp_ge_u32 s2, {P+npf}
s_cbranch_scc1 K1_end
s_load_dwordx2 s[4:5], s[0:1], 0
s_sub_u32 s3, s2, {P}
s_mul_i32 s3, s3, {per*16384}
v_lshl_add_u32 v1, v0, 4, s3
s_waitcnt lgkmcnt(0)
""")
    srd(8, 4, N*256)
    for i in range(per):
        I(f"s_mov_b32 s3, {i*16384}\nbuffer_load_dwordx4 v[{4+4*i}:{7+4*i}], v1, s[8:11], s3 offen")
    I("s_waitcnt vmcnt(0)")
I("K1_end:\ns_endpgm")

ENT, RNK, LQ, QF, OA, XA, XV, SS, PP, DA = 8, 16, 24, 48, 64, 96, 128, 160, 168, 172
AS, AV, SW, NODEC, LADDR, ROWOFF, ONE, LCUR = 180, 184, 192, 196, 197, 198, 199, 200
NV2 = 204
MSK = 40
e(f".globl {NAME}_kernel\n.p2align 8\n.type {NAME}_kernel,@function\n{NAME}_kernel:")
I(f"""
s_cmp_ge_u32 s2, {NBIN}
s_cbranch_scc1 K2_end
s_load_dwordx8 s[60:67], s[0:1], 0
s_load_dwordx4 s[68:71], s[0:1], 32
s_load_dwordx2 s[72:73], s[0:1], 56
v_lshrrev_b32 v1, 6, v0
v_and_b32 v2, 63, v0
v_readfirstlane_b32 s3, v1
v_lshrrev_b32 v3, 4, v2
v_and_b32 v4, 15, v2
s_mul_i32 s4, s2, {NPB}
s_mul_i32 s5, s3, {RING}
s_lshl_b32 s6, s3, 12
s_mov_b32 s36, 0xffffff00
v_lshl_add_u32 v{NODEC}, v4, 3, s3
v_add_u32 v5, s4, v{NODEC}
v_lshlrev_b32 v5, 8, v5
v_lshl_add_u32 v{ROWOFF}, v3, 6, v5
v_xor_b32 v5, v4, v3
v_lshlrev_b32 v5, 4, v5
v_lshl_add_u32 v5, v3, 8, v5
v_add_u32 v5, s6, v5
v_lshlrev_b32 v6, 4, v0
s_lshl_b32 s7, s2, 14
s_add_u32 s37, s7, 8192
s_waitcnt lgkmcnt(0)
""")
srd(8, 60, N*256); srd(20, 66, 32768); srd(24, 68, 32768); srd(12, 72, NBIN*P*128)
I(f"""
s_mov_b32 m0, s6
s_add_u32 s38, s6, {WV_OFF}
""")
for i in range(4): I(f"buffer_load_dwordx4 v5, s[20:23], 0 offen offset:{1024*i} lds")
for ks in range(4): I(f"buffer_load_dwordx4 {vr(LQ+4*ks,4)}, v{ROWOFF}, s[8:11], 0 offen offset:{16*ks}")
I("s_mov_b32 m0, s38\ns_nop 0")
for i in range(4): I(f"buffer_load_dwordx4 v5, s[24:27], 0 offen offset:{1024*i} lds")
I(f"""
buffer_load_dwordx4 {vr(ENT,4)}, v6, s[12:15], s7 offen
buffer_load_dwordx4 {vr(ENT+4,4)}, v6, s[12:15], s37 offen
""")
srd(16, 70, N*256); srd(28, 62, E*4); srd(32, 64, E*4)
I(f"""
v_mov_b32 v7, 0
v_lshlrev_b32 v6, 2, v0
v_add_u32 v6, {CNT_OFF}, v6
v_cmp_gt_u32 vcc, 16, v0
s_and_saveexec_b64 s[74:75], vcc
ds_write_b32 v6, v7
s_mov_b64 exec, -1
v_mov_b32 v{ONE}, 1
v_and_b32 v5, 7, v4
v_lshlrev_b32 v5, 1, v5
v_lshrrev_b32 v6, 3, v4
v_or_b32 v5, v5, v6
v_and_b32 v6, 3, v4
v_lshlrev_b32 v6, 2, v6
v_lshrrev_b32 v7, 2, v4
v_or_b32 v6, v6, v7
v_lshlrev_b32 v7, 2, v3
v_xor_b32 v7, v7, v5
v_lshlrev_b32 v7, 4, v7
v_lshl_add_u32 v7, v6, 8, v7
v_add_u32 v{AS}, s5, v7
""")
for ks in range(1, 4): I(f"v_xor_b32 v{AS+ks}, {16*ks}, v{AS}")
I(f"""
v_bfe_u32 v6, v2, 2, 2
v_and_b32 v7, 3, v2
v_lshl_add_u32 v5, v3, 2, v6
v_and_b32 v{DA}, 7, v5
v_lshlrev_b32 v{DA}, 1, v{DA}
v_lshrrev_b32 v5, 3, v5
v_or_b32 v5, v5, v{DA}
v_lshrrev_b32 v{DA}, 1, v7
v_xor_b32 v5, v5, v{DA}
v_lshlrev_b32 v5, 4, v5
v_and_b32 v{DA}, 1, v7
v_lshl_add_u32 v5, v{DA}, 3, v5
v_lshl_add_u32 v{DA}, v6, 2, v3
v_lshl_add_u32 v5, v{DA}, 8, v5
v_add_u32 v{AV}, s5, v5
""")
for ft in range(1, 8): I(f"v_xor_b32 v{AV+ft}, {32*ft}, v{AV}")
for i in range(4):
    I(f"""
v_lshl_add_u32 v5, v3, 2, {i}
v_and_b32 v{DA}, 7, v5
v_lshlrev_b32 v{DA}, 1, v{DA}
v_lshrrev_b32 v5, 3, v5
v_or_b32 v5, v5, v{DA}
v_xor_b32 v5, v5, v4
v_lshlrev_b32 v{SW+i}, 4, v5
""")
I(f"""
s_mul_i32 s39, s3, {CAP*4}
s_add_u32 s39, s39, {LIST_OFF}
v_lshl_add_u32 v{LADDR}, v3, 4, s39
v_lshl_add_u32 v5, v3, 5, v6
v_lshlrev_b32 v5, 8, v5
v_lshl_add_u32 v5, v7, 6, v5
v_lshl_add_u32 v{DA}, v6, 4, v5
""")
for u in range(1, 4): I(f"v_xor_b32 v{DA+u}, {16*u}, v{DA}")
I("s_waitcnt vmcnt(2) lgkmcnt(0)\ns_barrier")
for hb in range(2):
    for tt in range(4):
        t = 4*hb + tt
        for ks in range(4):
            for h in range(2):
                I(f"ds_read_b64_tr_b16 {vr(XA+16*tt+4*ks+2*h,2)}, v{DA+(t>>1)} offset:{(8*ks+4*h)*256+(t&1)*8}")
    for tt in range(4):
        t = 4*hb + tt
        I(f"s_waitcnt lgkmcnt({min(15, 8*(3-tt))})")
        for ks in range(4):
            c = "0" if ks == 0 else vr(OA+4*t,4)
            I(f"v_mfma_f32_16x16x32_bf16 {vr(OA+4*t,4)}, {vr(XA+16*tt+4*ks,4)}, {vr(LQ+4*ks,4)}, {c}")
import struct
cfold = -(128 ** -0.5) * 1.4426950408889634
cbits = struct.unpack("<I", struct.pack("<f", cfold))[0]
I(f"s_mov_b32 s76, {cbits:#x}\ns_nop 7")
for i in range(32): I(f"v_mul_f32 v{OA+i}, s76, v{OA+i}")
for i in range(16): I(f"v_cvt_pk_bf16_f32 v{QF+i}, v{OA+2*i}, v{OA+2*i+1}")
for i in range(32): I(f"v_mov_b32 v{OA+i}, 0")
I(f"""
s_mov_b32 s77, 0
s_mov_b32 s78, 0x01000000
s_mov_b32 s79, {MARK}
s_waitcnt vmcnt(0)
v_lshrrev_b32 v5, 3, v0
v_mov_b32 v6, {OVFN_OFF}
""")
for k, j in enumerate((0, 4)):
    I(f"""
v_cmp_eq_u32 vcc, s79, v{ENT+j}
s_and_saveexec_b64 s[74:75], vcc
s_cbranch_execz K2_nomark{k}
ds_add_rtn_u32 v7, v6, v{ONE}
v_add_u32 v1, {64*k}, v5
s_waitcnt lgkmcnt(0)
v_lshlrev_b32 v7, 2, v7
v_add_u32 v7, {OVFL_OFF}, v7
ds_write_b32 v7, v1
K2_nomark{k}:
s_mov_b64 exec, -1
""")
I("K2_round:")
for j in range(8):
    I(f"""
v_and_b32 v{DA+j}, 7, v{ENT+j}
v_lshlrev_b32 v5, 2, v{DA+j}
v_add_u32 v5, {CNT_OFF}, v5
v_mov_b32 v{RNK+j}, -1
v_cmpx_gt_u32 vcc, s78, v{ENT+j}
ds_add_rtn_u32 v{RNK+j}, v5, v{ONE}
s_mov_b64 exec, -1
""")
I(f"s_mov_b32 s80, 0\ns_mov_b32 s81, {CAP}\ns_waitcnt lgkmcnt(0)\nK2_sub:")
for j in range(8):
    I(f"""
v_and_b32 v5, 7, v{ENT+j}
v_subrev_u32 v6, s80, v{RNK+j}
v_mad_u32_u24 v5, v5, s81, v6
v_lshlrev_b32 v5, 2, v5
v_add_u32 v5, {LIST_OFF}, v5
v_cmpx_gt_u32 vcc, s81, v6
ds_write_b32 v5, v{ENT+j}
s_mov_b64 exec, -1
""")
I(f"""
v_and_b32 v5, 15, v0
v_lshlrev_b32 v5, 2, v5
v_add_u32 v5, {CNT_OFF}, v5
s_waitcnt lgkmcnt(0)
s_barrier
ds_read_b32 v5, v5
s_waitcnt lgkmcnt(0)
s_nop 0
v_readlane_b32 s82, v5, s3
v_readlane_b32 s83, v5, 0
""")
for k in range(1, 8): I(f"v_readlane_b32 s84, v5, {k}\ns_max_u32 s83, s83, s84")
I(f"""
v_readlane_b32 s85, v5, 8
s_sub_u32 s82, s82, s80
s_cselect_b32 s82, 0, s82
s_min_u32 s82, s82, {CAP}
s_add_u32 s84, s82, 31
s_lshr_b32 s86, s84, 5
s_cmp_eq_u32 s86, 0
s_cbranch_scc1 K2_done
v_and_b32 v5, 31, v0
v_add_u32 v5, s82, v5
s_lshl_b32 s84, s86, 5
v_lshl_add_u32 v6, v5, 2, s39
v_mov_b32 v7, {SENT}
v_cmpx_gt_u32 vcc, s84, v5
ds_write_b32 v6, v7
s_mov_b64 exec, -1
v_mov_b32 v{LCUR}, v{LADDR}
ds_read_b128 {vr(LQ,4)}, v{LCUR}
ds_read_b128 {vr(LQ+4,4)}, v{LCUR} offset:64
ds_read_b128 {vr(LQ+8,4)}, v{LCUR} offset:128
""")
def dma(q, slot):
    I(f"s_add_u32 m0, s5, {slot*4096}")
    for i in range(4):
        I(f"v_and_or_b32 v{DA+i}, v{LQ+4*q+i}, s36, v{SW+i}")
    for i in range(4):
        I(f"buffer_load_dwordx4 v{DA+i}, s[8:11], 0 offen lds")
        if i < 3: I("s_add_u32 m0, m0, 1024\ns_nop 0")
I("s_waitcnt lgkmcnt(1)")
dma(0, 0); dma(1, 1)
I("s_waitcnt lgkmcnt(0)\ns_cmp_lt_u32 s86, 2\ns_cbranch_scc1 K2_it0")
dma(2, 2)
for j in range(3):
    sa, sb = (2*j) % 3, (2*j+1) % 3
    qa, qb = 2*j, 2*j+1
    qn1, qn2 = (2*j+3) % 6, (2*j+4) % 6
    I(f"""
K2_it{j}:
s_cmp_lt_u32 s86, 2
s_cbranch_scc1 K2_w0_{j}
s_waitcnt vmcnt(4)
s_branch K2_w1_{j}
K2_w0_{j}:
s_waitcnt vmcnt(0)
K2_w1_{j}:
""")
    for T, sl in ((0, sa), (1, sb)):
        for ks in range(4):
            I(f"ds_read_b128 {vr(XA+16*T+4*ks,4)}, v{AS+ks} offset:{sl*4096}")
    I(f"ds_read_b128 {vr(LQ+4*qn1,4)}, v{LCUR} offset:{(2*j+3)*64}")
    I(f"ds_read_b128 {vr(LQ+4*qn2,4)}, v{LCUR} offset:{(2*j+4)*64}")
    for T, q in ((0, qa), (1, qb)):
        for r in range(4):
            I(f"v_cmp_eq_u32_sdwa s[{MSK+8*T+2*r}:{MSK+8*T+2*r+1}], v{LQ+4*q+r}, v{NODEC} src0_sel:BYTE_0 src1_sel:DWORD")
    for ft in range(4):
        for T, sl in ((0, sa), (1, sb)):
            I(f"ds_read_b64_tr_b16 {vr(XV+4*ft+2*T,2)}, v{AV+ft} offset:{sl*4096}")
    I("s_waitcnt lgkmcnt(10)")
    for ks in range(4):
        for T in range(2):
            c = "0" if ks == 0 else vr(SS+4*T,4)
            I(f"v_mfma_f32_16x16x32_bf16 {vr(SS+4*T,4)}, {vr(XA+16*T+4*ks,4)}, {vr(QF+4*ks,4)}, {c}")
        if ks < 2:
            for ft in range(4+2*ks, 6+2*ks):
                for T, sl in ((0, sa), (1, sb)):
                    I(f"ds_read_b64_tr_b16 {vr(XV+4*ft+2*T,2)}, v{AV+ft} offset:{sl*4096}")
    I(f"s_waitcnt lgkmcnt(0)\ns_cmp_lt_u32 s86, 2\ns_cbranch_scc1 K2_nd_{j}")
    dma(qn1, sa)
    I(f"s_cmp_lt_u32 s86, 3\ns_cbranch_scc1 K2_nd_{j}")
    dma(qn2, sb)
    I(f"K2_nd_{j}:\ns_nop 4")
    for i in range(8): I(f"v_exp_f32 v{SS+i}, v{SS+i}")
    for i in range(8): I(f"v_add_f32 v{SS+i}, 1.0, v{SS+i}")
    for i in range(8): I(f"v_rcp_f32 v{SS+i}, v{SS+i}")
    for i in range(8): I(f"v_cndmask_b32 v{SS+i}, 0, v{SS+i}, s[{MSK+2*i}:{MSK+2*i+1}]")
    for i in range(4): I(f"v_cvt_pk_bf16_f32 v{PP+i}, v{SS+2*i}, v{SS+2*i+1}")
    I("s_nop 1")
    for ft in range(8):
        I(f"v_mfma_f32_16x16x32_bf16 {vr(OA+4*ft,4)}, {vr(XV+4*ft,4)}, {vr(PP,4)}, {vr(OA+4*ft,4)}")
    I(f"s_sub_u32 s86, s86, 1\ns_cmp_eq_u32 s86, 0\ns_cbranch_scc1 K2_done")
I(f"v_add_u32 v{LCUR}, 384, v{LCUR}\ns_branch K2_it0")
I(f"""
K2_done:
s_add_u32 s80, s80, {CAP}
s_cmp_lt_u32 s80, s83
s_cbranch_scc0 K2_nosub
s_barrier
s_branch K2_sub
K2_nosub:
s_cmp_lt_u32 s77, s85
s_cbranch_scc0 K2_epi
s_barrier
v_mov_b32 v7, 0
v_lshlrev_b32 v6, 2, v0
v_add_u32 v6, {CNT_OFF}, v6
v_cmp_gt_u32 vcc, 8, v0
s_and_saveexec_b64 s[74:75], vcc
ds_write_b32 v6, v7
s_mov_b64 exec, -1
s_lshl_b32 s84, s77, 2
s_add_u32 s84, s84, {OVFL_OFF}
v_mov_b32 v5, s84
ds_read_b32 v5, v5
s_add_u32 s77, s77, 1
s_waitcnt lgkmcnt(0)
s_nop 0
v_readfirstlane_b32 s84, v5
s_mul_i32 s84, s84, {CH}
v_lshl_add_u32 v1, v0, 2, s84
v_lshlrev_b32 v2, 2, v1
s_movk_i32 s87, 0x2000
buffer_load_dwordx4 {vr(XA,4)}, v2, s[32:35], 0 offen
buffer_load_dwordx4 {vr(XA+4,4)}, v2, s[32:35], s87 offen
buffer_load_dwordx4 {vr(XA+8,4)}, v2, s[28:31], 0 offen
buffer_load_dwordx4 {vr(XA+12,4)}, v2, s[28:31], s87 offen
s_mov_b32 s88, {E}
v_cmp_gt_u32 s[90:91], s88, v1
v_add_u32 v1, 2048, v1
v_cmp_gt_u32 s[92:93], s88, v1
v_cmp_gt_u32 vcc, {(CH-2048)//4}, v0
s_and_b64 s[92:93], s[92:93], vcc
v_mov_b32 v3, {SENT}
s_waitcnt vmcnt(0)
""")
for j in range(8):
    binlocal(XA+j, 5, 6, 7)
    m = "s[90:91]" if j < 4 else "s[92:93]"
    I(f"""
v_lshl_or_b32 v6, v{XA+8+j}, 8, v6
v_cmp_eq_u32 vcc, s2, v5
s_and_b64 vcc, vcc, {m}
s_nop 1
v_cndmask_b32 v{ENT+j}, v3, v6, vcc
""")
I(f"""
s_barrier
s_branch K2_round
K2_epi:
v_and_b32 v2, 63, v0
v_lshrrev_b32 v3, 4, v2
v_bfe_u32 v6, v2, 2, 2
v_and_b32 v7, 3, v2
v_lshl_add_u32 v5, v3, 2, v6
v_lshlrev_b32 v5, 8, v5
v_lshl_add_u32 v5, v7, 6, v5
v_lshl_add_u32 v5, v6, 4, v5
v_add_u32 v{DA}, {WV_OFF}, v5
""")
for u in range(1, 4): I(f"v_xor_b32 v{DA+u}, {16*u}, v{DA}")
def wvread(hb):
    for tt in range(4):
        t = 4*hb + tt
        for s in range(4):
            for h in range(2):
                I(f"ds_read_b64_tr_b16 {vr(XA+16*tt+4*s+2*h,2)}, v{DA+(t>>1)} offset:{(32*s+16*h)*256+(t&1)*8}")
wvread(0)
for i in range(16): I(f"v_cvt_pk_bf16_f32 v{QF+i}, v{OA+2*i}, v{OA+2*i+1}")
for hb in range(2):
    if hb: wvread(1)
    for tt in range(4):
        t = 4*hb + tt
        I(f"s_waitcnt lgkmcnt({min(15, 8*(3-tt))})")
        for s in range(4):
            c = "0" if s == 0 else vr(OA+4*t,4)
            I(f"v_mfma_f32_16x16x32_bf16 {vr(OA+4*t,4)}, {vr(XA+16*tt+4*s,4)}, {vr(QF+4*s,4)}, {c}")
I(f"v_cmp_gt_u32 vcc, {NPB}, v{NODEC}\ns_nop 7")
for i in range(16): I(f"v_cvt_pk_bf16_f32 v{LQ+i}, v{OA+2*i}, v{OA+2*i+1}")
I("s_and_saveexec_b64 s[74:75], vcc")
for u in range(4): I(f"buffer_store_dwordx4 {vr(LQ+4*u,4)}, v{ROWOFF}, s[16:19], 0 offen offset:{16*u}")
I("K2_end:\ns_endpgm")

if opt["extra"]: e(".globl nop_kernel\n.p2align 8\n.type nop_kernel,@function\nnop_kernel:\n    s_endpgm")
e('.section .rodata,"a"')
for nm, nv in (("bin_kernel", 64), (NAME+"_kernel", NV2)) + ((("nop_kernel", 8),) if opt["extra"] else ()):
    e(f""".p2align 6
.amdhsa_kernel {nm}
  .amdhsa_next_free_vgpr {nv}
  .amdhsa_next_free_sgpr 96
  .amdhsa_accum_offset {(nv+3)//4*4}
  .amdhsa_group_segment_fixed_size 0
  .amdhsa_kernarg_size 64
  .amdhsa_user_sgpr_count 2
  .amdhsa_user_sgpr_kernarg_segment_ptr 1
  .amdhsa_system_sgpr_workgroup_id_x 1
.end_amdhsa_kernel""")
open(sys.argv[1], "w").write("\n".join(out) + "\n")
```

```python
import sys
NAME = "standalone__kernel_systems_refs_featgraph__graph"
N, E, D = 25000, 400000, 128
NPB = 98
NBIN = 256
P = 128
CH = 3136
SENT = 0x7FFFFFFF
MARK = 0x7FFFFFFE
CAP = 544
RING = 12288
WV_OFF = 8 * RING
LIST_OFF = WV_OFF + 32768
CNT_OFF = LIST_OFF + 8 * CAP * 4
OVFN_OFF = CNT_OFF + 32
OVFL_OFF = CNT_OFF + 64
LDS2 = OVFL_OFF + 512
LDS1 = 32768 + 1024
LOG1 = 7
opt = dict(prefetch=0, extra=0, stamps=0, da=-1, db=-1)
for a in sys.argv[2:]:
    k, v = a.split("=")
    opt[k] = int(v)

out = []
def e(s=""):
    out.append(s)
def I(s):
    for l in s.strip("\n").split("\n"):
        l = l.strip()
        if l: out.append(("" if l.endswith(":") else "    ") + l)
def srd(d, b, n):
    I(f"s_mov_b32 s{d}, s{b}\ns_and_b32 s{d+1}, s{b+1}, 0xffff\ns_mov_b32 s{d+2}, {n}\ns_mov_b32 s{d+3}, 0x00020000")
def vr(a, n): return f"v[{a}:{a+n-1}]"

hdr = open("cdna_kernels/%s.s.ref" % NAME).read().split("\n")
for l in hdr[:9]: e(l)
G1 = P + opt["prefetch"]
e(f"; @launch kernel=bin_kernel grid=({G1},1,1) block=(1024,1,1) lds={LDS1}")
e(f"; @launch kernel={NAME}_kernel grid=({NBIN},1,1) block=(512,1,1) lds={LDS2}")
for _i in range(opt["extra"]): e("; @launch kernel=nop_kernel grid=(1,1,1) block=(64,1,1) lds=0")
if opt["da"] >= 0: e("; @launch kernel=diag_kernel grid=(1,1,1) block=(64,1,1) lds=0")
e('.amdgcn_target "amdgcn-amd-amdhsa--gfx950"')
e(".text")

SV = None
def stamp(k, neg=False):
    if not opt["stamps"]: return
    I("s_memrealtime s[96:97]\ns_waitcnt lgkmcnt(0)")
    if neg: I("s_not_b32 s96, s96")
    I(f"v_writelane_b32 v{SV}, s96, {k}")
def stamp_flush(summask, maxmask, wave0cond, back):
    if not opt["stamps"]: return
    I(f"""
s_mov_b64 exec, -1
s_load_dwordx2 s[98:99], s[0:1], 48
v_mbcnt_lo_u32_b32 v1, -1, 0
v_mbcnt_hi_u32_b32 v1, -1, v1
v_lshlrev_b32 v1, 2, v1
v_lshrrev_b32 v2, 6, v0
s_waitcnt lgkmcnt(0)
v_readfirstlane_b32 s96, v2
s_add_u32 s92, s98, {back}
s_addc_u32 s93, s99, 0
s_and_b32 s93, s93, 0xffff
s_mov_b32 s94, 64
s_mov_b32 s95, 0x00020000
s_cmp_eq_u32 s96, 0
s_cbranch_scc0 L_sf{abs(back)}
s_mov_b64 exec, {maxmask}
buffer_atomic_umax v{SV}, v1, s[92:95], 0 offen sc1
s_mov_b64 exec, {summask}
buffer_atomic_add v{SV}, v1, s[92:95], 0 offen sc1
L_sf{abs(back)}:
""")

def binlocal(dst, bin_, loc, tmp):
    I(f"v_mul_u32_u24 v{bin_}, 21400, v{dst}\nv_lshrrev_b32 v{bin_}, 21, v{bin_}\nv_mul_u32_u24 v{tmp}, {NPB}, v{bin_}\nv_sub_u32 v{loc}, v{dst}, v{tmp}")

e(".globl bin_kernel\n.p2align 8\n.type bin_kernel,@function\nbin_kernel:")
I(f"""
s_cmp_ge_u32 s2, {P}
s_cbranch_scc1 K1_other
""")
SV = 40
stamp(0, True); stamp(1)
I(f"""
s_load_dwordx4 s[4:7], s[0:1], 8
s_load_dwordx2 s[8:9], s[0:1], 56
s_mul_i32 s3, s2, {CH}
v_lshl_add_u32 v1, v0, 2, s3
v_mov_b32 v4, {SENT}
v_mov_b32 v5, v4
v_mov_b32 v6, v4
v_mov_b32 v7, v4
v_lshlrev_b32 v2, 4, v0
v_mov_b32 v3, 0
v_lshlrev_b32 v8, 2, v0
s_waitcnt lgkmcnt(0)
""")
srd(12, 4, E*4); srd(16, 6, E*4); srd(20, 8, NBIN*P*128)
I(f"""
s_mov_b32 s24, {E}
v_cmp_gt_u32 vcc, {CH//4}, v0
v_cmp_gt_u32 s[26:27], s24, v1
v_lshlrev_b32 v1, 2, v1
s_and_b64 s[26:27], s[26:27], vcc
s_mov_b64 exec, s[26:27]
s_cbranch_execz K1_noload
buffer_load_dwordx4 v[12:15], v1, s[16:19], 0 offen
buffer_load_dwordx4 v[16:19], v1, s[12:15], 0 offen
K1_noload:
s_mov_b64 exec, -1
ds_write_b128 v2, v[4:7]
ds_write_b128 v2, v[4:7] offset:16384
v_cmp_gt_u32 vcc, 256, v0
s_and_saveexec_b64 s[28:29], vcc
ds_write_b32 v8, v3 offset:32768
s_mov_b64 exec, -1
v_mov_b32 v9, 1
s_waitcnt lgkmcnt(0)
s_barrier
s_mov_b64 exec, s[26:27]
s_cbranch_execz K1_nobin
s_waitcnt vmcnt(1)
""")
for j in range(4):
    binlocal(12+j, 20+j, 24+j, 28)
    I(f"v_lshlrev_b32 v28, 2, v{20+j}\nds_add_rtn_u32 v{32+j}, v28, v9 offset:32768")
I("s_waitcnt vmcnt(0)")
stamp(2)
for j in range(4):
    I(f"v_lshl_or_b32 v{24+j}, v{16+j}, 8, v{24+j}\nv_lshlrev_b32 v{20+j}, 7, v{20+j}")
for j in range(4):
    I(f"""
s_waitcnt lgkmcnt({3-j if j<3 else 0})
v_lshl_add_u32 v{20+j}, v{32+j}, 2, v{20+j}
v_cmpx_gt_u32 vcc, 32, v{32+j}
ds_write_b32 v{20+j}, v{24+j}
s_mov_b64 exec, s[26:27]
""") if j == 3 else I(f"""
s_waitcnt lgkmcnt(3)
v_lshl_add_u32 v{20+j}, v{32+j}, 2, v{20+j}
v_cmpx_gt_u32 vcc, 32, v{32+j}
ds_write_b32 v{20+j}, v{24+j}
s_mov_b64 exec, s[26:27]
""")
I(f"""
K1_nobin:
s_mov_b64 exec, -1
v_lshrrev_b32 v10, 3, v0
v_and_b32 v11, 7, v0
v_lshlrev_b32 v12, 2, v10
v_lshlrev_b32 v13, 14, v10
v_lshl_add_u32 v13, v11, 4, v13
s_lshl_b32 s3, s2, 7
s_add_u32 s4, s3, {128*16384}
v_cmp_eq_u32 vcc, 0, v11
v_mov_b32 v14, {MARK}
s_waitcnt lgkmcnt(0)
s_barrier
v_cndmask_b32 v14, v4, v14, vcc
ds_read_b128 v[16:19], v2
ds_read_b32 v24, v12 offset:32768
ds_read_b128 v[20:23], v2 offset:16384
ds_read_b32 v25, v12 offset:{32768+512}
s_waitcnt lgkmcnt(2)
v_cmp_lt_u32 vcc, 32, v24
s_nop 1
v_cndmask_b32 v16, v16, v14, vcc
v_cndmask_b32 v17, v17, v4, vcc
v_cndmask_b32 v18, v18, v4, vcc
v_cndmask_b32 v19, v19, v4, vcc
buffer_store_dwordx4 v[16:19], v13, s[20:23], s3 offen
s_waitcnt lgkmcnt(0)
v_cmp_lt_u32 vcc, 32, v25
s_nop 1
v_cndmask_b32 v20, v20, v14, vcc
v_cndmask_b32 v21, v21, v4, vcc
v_cndmask_b32 v22, v22, v4, vcc
v_cndmask_b32 v23, v23, v4, vcc
buffer_store_dwordx4 v[20:23], v13, s[20:23], s4 offen
""")
if opt["stamps"]: I("s_waitcnt vmcnt(0)")
stamp(3); stamp(4)
stamp_flush(0b1110, 0b10001, None, 512)
I("""
s_endpgm
K1_other:
""")
if opt["prefetch"]:
    npf = opt["prefetch"]
    per = -(-(N*256) // (npf*1024*16))
    I(f"""
s_cmp_ge_u32 s2, {P+npf}
s_cbranch_scc1 K1_end
s_load_dwordx2 s[4:5], s[0:1], 0
s_sub_u32 s3, s2, {P}
s_mul_i32 s3, s3, {per*16384}
v_lshl_add_u32 v1, v0, 4, s3
s_waitcnt lgkmcnt(0)
""")
    srd(8, 4, N*256)
    for i in range(per):
        I(f"s_mov_b32 s3, {i*16384}\nbuffer_load_dwordx4 v[{4+4*i}:{7+4*i}], v1, s[8:11], s3 offen")
    I("s_waitcnt vmcnt(0)")
I("K1_end:\ns_endpgm")

ENT, RNK, LQ, QF, OA, XA, XV, SS, PP, DA = 8, 16, 24, 48, 64, 96, 128, 160, 168, 172
AS, AV, SW, NODEC, LADDR, ROWOFF, ONE, LCUR = 180, 184, 192, 196, 197, 198, 199, 200
NV2 = 204
MSK = 40
e(f".globl {NAME}_kernel\n.p2align 8\n.type {NAME}_kernel,@function\n{NAME}_kernel:")
I(f"""
s_cmp_ge_u32 s2, {NBIN}
s_cbranch_scc1 K2_end
""")
SV = 203
stamp(15, True); stamp(5)
I(f"""
s_load_dwordx8 s[60:67], s[0:1], 0
s_load_dwordx4 s[68:71], s[0:1], 32
s_load_dwordx2 s[72:73], s[0:1], 56
v_lshrrev_b32 v1, 6, v0
v_and_b32 v2, 63, v0
v_readfirstlane_b32 s3, v1
v_lshrrev_b32 v3, 4, v2
v_and_b32 v4, 15, v2
s_mul_i32 s4, s2, {NPB}
s_mul_i32 s5, s3, {RING}
s_lshl_b32 s6, s3, 12
s_mov_b32 s36, 0xffffff00
v_lshl_add_u32 v{NODEC}, v4, 3, s3
v_add_u32 v5, s4, v{NODEC}
v_lshlrev_b32 v5, 8, v5
v_lshl_add_u32 v{ROWOFF}, v3, 6, v5
v_xor_b32 v5, v4, v3
v_lshlrev_b32 v5, 4, v5
v_lshl_add_u32 v5, v3, 8, v5
v_add_u32 v5, s6, v5
v_lshlrev_b32 v6, 4, v0
s_lshl_b32 s7, s2, 14
s_add_u32 s37, s7, 8192
s_waitcnt lgkmcnt(0)
""")
srd(8, 60, N*256); srd(20, 66, 32768); srd(24, 68, 32768); srd(12, 72, NBIN*P*128)
I(f"""
s_mov_b32 m0, s6
s_add_u32 s38, s6, {WV_OFF}
""")
for i in range(4): I(f"buffer_load_dwordx4 v5, s[20:23], 0 offen offset:{1024*i} lds")
for ks in range(4): I(f"buffer_load_dwordx4 {vr(LQ+4*ks,4)}, v{ROWOFF}, s[8:11], 0 offen offset:{16*ks}")
I("s_mov_b32 m0, s38\ns_nop 0")
for i in range(4): I(f"buffer_load_dwordx4 v5, s[24:27], 0 offen offset:{1024*i} lds")
I(f"""
buffer_load_dwordx4 {vr(ENT,4)}, v6, s[12:15], s7 offen
buffer_load_dwordx4 {vr(ENT+4,4)}, v6, s[12:15], s37 offen
""")
srd(16, 70, N*256); srd(28, 62, E*4); srd(32, 64, E*4)
I(f"""
v_mov_b32 v7, 0
v_lshlrev_b32 v6, 2, v0
v_add_u32 v6, {CNT_OFF}, v6
v_cmp_gt_u32 vcc, 16, v0
s_and_saveexec_b64 s[74:75], vcc
ds_write_b32 v6, v7
s_mov_b64 exec, -1
v_mov_b32 v{ONE}, 1
v_and_b32 v5, 7, v4
v_lshlrev_b32 v5, 1, v5
v_lshrrev_b32 v6, 3, v4
v_or_b32 v5, v5, v6
v_and_b32 v6, 3, v4
v_lshlrev_b32 v6, 2, v6
v_lshrrev_b32 v7, 2, v4
v_or_b32 v6, v6, v7
v_lshlrev_b32 v7, 2, v3
v_xor_b32 v7, v7, v5
v_lshlrev_b32 v7, 4, v7
v_lshl_add_u32 v7, v6, 8, v7
v_add_u32 v{AS}, s5, v7
""")
for ks in range(1, 4): I(f"v_xor_b32 v{AS+ks}, {16*ks}, v{AS}")
I(f"""
v_bfe_u32 v6, v2, 2, 2
v_and_b32 v7, 3, v2
v_lshl_add_u32 v5, v3, 2, v6
v_and_b32 v{DA}, 7, v5
v_lshlrev_b32 v{DA}, 1, v{DA}
v_lshrrev_b32 v5, 3, v5
v_or_b32 v5, v5, v{DA}
v_lshrrev_b32 v{DA}, 1, v7
v_xor_b32 v5, v5, v{DA}
v_lshlrev_b32 v5, 4, v5
v_and_b32 v{DA}, 1, v7
v_lshl_add_u32 v5, v{DA}, 3, v5
v_lshl_add_u32 v{DA}, v6, 2, v3
v_lshl_add_u32 v5, v{DA}, 8, v5
v_add_u32 v{AV}, s5, v5
""")
for ft in range(1, 8): I(f"v_xor_b32 v{AV+ft}, {32*ft}, v{AV}")
for i in range(4):
    I(f"""
v_lshl_add_u32 v5, v3, 2, {i}
v_and_b32 v{DA}, 7, v5
v_lshlrev_b32 v{DA}, 1, v{DA}
v_lshrrev_b32 v5, 3, v5
v_or_b32 v5, v5, v{DA}
v_xor_b32 v5, v5, v4
v_lshlrev_b32 v{SW+i}, 4, v5
""")
I(f"""
s_mul_i32 s39, s3, {CAP*4}
s_add_u32 s39, s39, {LIST_OFF}
v_lshl_add_u32 v{LADDR}, v3, 4, s39
v_lshl_add_u32 v5, v3, 5, v6
v_lshlrev_b32 v5, 8, v5
v_lshl_add_u32 v5, v7, 6, v5
v_lshl_add_u32 v{DA}, v6, 4, v5
""")
for u in range(1, 4): I(f"v_xor_b32 v{DA+u}, {16*u}, v{DA}")
I("s_waitcnt vmcnt(2) lgkmcnt(0)\ns_barrier")
stamp(6)
for hb in range(2):
    for tt in range(4):
        t = 4*hb + tt
        for ks in range(4):
            for h in range(2):
                I(f"ds_read_b64_tr_b16 {vr(XA+16*tt+4*ks+2*h,2)}, v{DA+(t>>1)} offset:{(8*ks+4*h)*256+(t&1)*8}")
    for tt in range(4):
        t = 4*hb + tt
        I(f"s_waitcnt lgkmcnt({min(15, 8*(3-tt))})")
        for ks in range(4):
            c = "0" if ks == 0 else vr(OA+4*t,4)
            I(f"v_mfma_f32_16x16x32_bf16 {vr(OA+4*t,4)}, {vr(XA+16*tt+4*ks,4)}, {vr(LQ+4*ks,4)}, {c}")
import struct
cfold = -(128 ** -0.5) * 1.4426950408889634
cbits = struct.unpack("<I", struct.pack("<f", cfold))[0]
I(f"s_mov_b32 s76, {cbits:#x}\ns_nop 7")
for i in range(32): I(f"v_mul_f32 v{OA+i}, s76, v{OA+i}")
for i in range(16): I(f"v_cvt_pk_bf16_f32 v{QF+i}, v{OA+2*i}, v{OA+2*i+1}")
for i in range(32): I(f"v_mov_b32 v{OA+i}, 0")
stamp(7)
I(f"""
s_mov_b32 s77, 0
s_mov_b32 s78, 0x01000000
s_mov_b32 s79, {MARK}
s_waitcnt vmcnt(0)
""")
stamp(8)
I(f"""
v_lshrrev_b32 v5, 3, v0
v_mov_b32 v6, {OVFN_OFF}
""")
for k, j in enumerate((0, 4)):
    I(f"""
v_cmp_eq_u32 vcc, s79, v{ENT+j}
s_and_saveexec_b64 s[74:75], vcc
s_cbranch_execz K2_nomark{k}
ds_add_rtn_u32 v7, v6, v{ONE}
v_add_u32 v1, {64*k}, v5
s_waitcnt lgkmcnt(0)
v_lshlrev_b32 v7, 2, v7
v_add_u32 v7, {OVFL_OFF}, v7
ds_write_b32 v7, v1
K2_nomark{k}:
s_mov_b64 exec, -1
""")
I("K2_round:")
for j in range(8):
    I(f"""
v_and_b32 v{DA+j}, 7, v{ENT+j}
v_lshlrev_b32 v5, 2, v{DA+j}
v_add_u32 v5, {CNT_OFF}, v5
v_mov_b32 v{RNK+j}, -1
v_cmpx_gt_u32 vcc, s78, v{ENT+j}
ds_add_rtn_u32 v{RNK+j}, v5, v{ONE}
s_mov_b64 exec, -1
""")
I(f"s_mov_b32 s80, 0\ns_mov_b32 s81, {CAP}\ns_waitcnt lgkmcnt(0)\nK2_sub:")
for j in range(8):
    I(f"""
v_and_b32 v5, 7, v{ENT+j}
v_subrev_u32 v6, s80, v{RNK+j}
v_mad_u32_u24 v5, v5, s81, v6
v_lshlrev_b32 v5, 2, v5
v_add_u32 v5, {LIST_OFF}, v5
v_cmpx_gt_u32 vcc, s81, v6
ds_write_b32 v5, v{ENT+j}
s_mov_b64 exec, -1
""")
I(f"""
v_and_b32 v5, 15, v0
v_lshlrev_b32 v5, 2, v5
v_add_u32 v5, {CNT_OFF}, v5
s_waitcnt lgkmcnt(0)
s_barrier
ds_read_b32 v5, v5
s_waitcnt lgkmcnt(0)
s_nop 0
v_readlane_b32 s82, v5, s3
v_readlane_b32 s83, v5, 0
""")
stamp(9)
for k in range(1, 8): I(f"v_readlane_b32 s84, v5, {k}\ns_max_u32 s83, s83, s84")
I(f"""
v_readlane_b32 s85, v5, 8
s_sub_u32 s82, s82, s80
s_cselect_b32 s82, 0, s82
s_min_u32 s82, s82, {CAP}
s_add_u32 s84, s82, 31
s_lshr_b32 s86, s84, 5
s_cmp_eq_u32 s86, 0
s_cbranch_scc1 K2_done
v_and_b32 v5, 31, v0
v_add_u32 v5, s82, v5
s_lshl_b32 s84, s86, 5
v_lshl_add_u32 v6, v5, 2, s39
v_mov_b32 v7, {SENT}
v_cmpx_gt_u32 vcc, s84, v5
ds_write_b32 v6, v7
s_mov_b64 exec, -1
v_mov_b32 v{LCUR}, v{LADDR}
ds_read_b128 {vr(LQ,4)}, v{LCUR}
ds_read_b128 {vr(LQ+4,4)}, v{LCUR} offset:64
ds_read_b128 {vr(LQ+8,4)}, v{LCUR} offset:128
""")
def dma(q, slot):
    I(f"s_add_u32 m0, s5, {slot*4096}")
    for i in range(4):
        I(f"v_and_or_b32 v{DA+i}, v{LQ+4*q+i}, s36, v{SW+i}")
    for i in range(4):
        I(f"buffer_load_dwordx4 v{DA+i}, s[8:11], 0 offen lds")
        if i < 3: I("s_add_u32 m0, m0, 1024\ns_nop 0")
I("s_waitcnt lgkmcnt(1)")
dma(0, 0); dma(1, 1)
I("s_waitcnt lgkmcnt(0)\ns_cmp_lt_u32 s86, 2\ns_cbranch_scc1 K2_it0")
dma(2, 2)
if opt["stamps"]:
    I("s_waitcnt vmcnt(4)")
    stamp(10)
for j in range(3):
    sa, sb = (2*j) % 3, (2*j+1) % 3
    qa, qb = 2*j, 2*j+1
    qn1, qn2 = (2*j+3) % 6, (2*j+4) % 6
    I(f"""
K2_it{j}:
s_cmp_lt_u32 s86, 2
s_cbranch_scc1 K2_w0_{j}
s_waitcnt vmcnt(4)
s_branch K2_w1_{j}
K2_w0_{j}:
s_waitcnt vmcnt(0)
K2_w1_{j}:
""")
    for T, sl in ((0, sa), (1, sb)):
        for ks in range(4):
            I(f"ds_read_b128 {vr(XA+16*T+4*ks,4)}, v{AS+ks} offset:{sl*4096}")
    I(f"ds_read_b128 {vr(LQ+4*qn1,4)}, v{LCUR} offset:{(2*j+3)*64}")
    I(f"ds_read_b128 {vr(LQ+4*qn2,4)}, v{LCUR} offset:{(2*j+4)*64}")
    for T, q in ((0, qa), (1, qb)):
        for r in range(4):
            I(f"v_cmp_eq_u32_sdwa s[{MSK+8*T+2*r}:{MSK+8*T+2*r+1}], v{LQ+4*q+r}, v{NODEC} src0_sel:BYTE_0 src1_sel:DWORD")
    for ft in range(4):
        for T, sl in ((0, sa), (1, sb)):
            I(f"ds_read_b64_tr_b16 {vr(XV+4*ft+2*T,2)}, v{AV+ft} offset:{sl*4096}")
    I("s_waitcnt lgkmcnt(10)")
    for ks in range(4):
        for T in range(2):
            c = "0" if ks == 0 else vr(SS+4*T,4)
            I(f"v_mfma_f32_16x16x32_bf16 {vr(SS+4*T,4)}, {vr(XA+16*T+4*ks,4)}, {vr(QF+4*ks,4)}, {c}")
        if ks < 2:
            for ft in range(4+2*ks, 6+2*ks):
                for T, sl in ((0, sa), (1, sb)):
                    I(f"ds_read_b64_tr_b16 {vr(XV+4*ft+2*T,2)}, v{AV+ft} offset:{sl*4096}")
    I(f"s_waitcnt lgkmcnt(0)\ns_cmp_lt_u32 s86, 2\ns_cbranch_scc1 K2_nd_{j}")
    dma(qn1, sa)
    I(f"s_cmp_lt_u32 s86, 3\ns_cbranch_scc1 K2_nd_{j}")
    dma(qn2, sb)
    I(f"K2_nd_{j}:\ns_nop 4")
    for i in range(8): I(f"v_exp_f32 v{SS+i}, v{SS+i}")
    for i in range(8): I(f"v_add_f32 v{SS+i}, 1.0, v{SS+i}")
    for i in range(8): I(f"v_rcp_f32 v{SS+i}, v{SS+i}")
    for i in range(8): I(f"v_cndmask_b32 v{SS+i}, 0, v{SS+i}, s[{MSK+2*i}:{MSK+2*i+1}]")
    for i in range(4): I(f"v_cvt_pk_bf16_f32 v{PP+i}, v{SS+2*i}, v{SS+2*i+1}")
    I("s_nop 1")
    for ft in range(8):
        I(f"v_mfma_f32_16x16x32_bf16 {vr(OA+4*ft,4)}, {vr(XV+4*ft,4)}, {vr(PP,4)}, {vr(OA+4*ft,4)}")
    I(f"s_sub_u32 s86, s86, 1\ns_cmp_eq_u32 s86, 0\ns_cbranch_scc1 K2_done")
I(f"v_add_u32 v{LCUR}, 384, v{LCUR}\ns_branch K2_it0")
I("K2_done:")
stamp(11); stamp(12)
I(f"""
s_add_u32 s80, s80, {CAP}
s_cmp_lt_u32 s80, s83
s_cbranch_scc0 K2_nosub
s_barrier
s_branch K2_sub
K2_nosub:
s_cmp_lt_u32 s77, s85
s_cbranch_scc0 K2_epi
s_barrier
v_mov_b32 v7, 0
v_lshlrev_b32 v6, 2, v0
v_add_u32 v6, {CNT_OFF}, v6
v_cmp_gt_u32 vcc, 8, v0
s_and_saveexec_b64 s[74:75], vcc
ds_write_b32 v6, v7
s_mov_b64 exec, -1
s_lshl_b32 s84, s77, 2
s_add_u32 s84, s84, {OVFL_OFF}
v_mov_b32 v5, s84
ds_read_b32 v5, v5
s_add_u32 s77, s77, 1
s_waitcnt lgkmcnt(0)
s_nop 0
v_readfirstlane_b32 s84, v5
s_mul_i32 s84, s84, {CH}
v_lshl_add_u32 v1, v0, 2, s84
v_lshlrev_b32 v2, 2, v1
s_movk_i32 s87, 0x2000
buffer_load_dwordx4 {vr(XA,4)}, v2, s[32:35], 0 offen
buffer_load_dwordx4 {vr(XA+4,4)}, v2, s[32:35], s87 offen
buffer_load_dwordx4 {vr(XA+8,4)}, v2, s[28:31], 0 offen
buffer_load_dwordx4 {vr(XA+12,4)}, v2, s[28:31], s87 offen
s_mov_b32 s88, {E}
v_cmp_gt_u32 s[90:91], s88, v1
v_add_u32 v1, 2048, v1
v_cmp_gt_u32 s[92:93], s88, v1
v_cmp_gt_u32 vcc, {(CH-2048)//4}, v0
s_and_b64 s[92:93], s[92:93], vcc
v_mov_b32 v3, {SENT}
s_waitcnt vmcnt(0)
""")
for j in range(8):
    binlocal(XA+j, 5, 6, 7)
    m = "s[90:91]" if j < 4 else "s[92:93]"
    I(f"""
v_lshl_or_b32 v6, v{XA+8+j}, 8, v6
v_cmp_eq_u32 vcc, s2, v5
s_and_b64 vcc, vcc, {m}
s_nop 1
v_cndmask_b32 v{ENT+j}, v3, v6, vcc
""")
I(f"""
s_barrier
s_branch K2_round
K2_epi:
v_and_b32 v2, 63, v0
v_lshrrev_b32 v3, 4, v2
v_bfe_u32 v6, v2, 2, 2
v_and_b32 v7, 3, v2
v_lshl_add_u32 v5, v3, 2, v6
v_lshlrev_b32 v5, 8, v5
v_lshl_add_u32 v5, v7, 6, v5
v_lshl_add_u32 v5, v6, 4, v5
v_add_u32 v{DA}, {WV_OFF}, v5
""")
for u in range(1, 4): I(f"v_xor_b32 v{DA+u}, {16*u}, v{DA}")
def wvread(hb):
    for tt in range(4):
        t = 4*hb + tt
        for s in range(4):
            for h in range(2):
                I(f"ds_read_b64_tr_b16 {vr(XA+16*tt+4*s+2*h,2)}, v{DA+(t>>1)} offset:{(32*s+16*h)*256+(t&1)*8}")
wvread(0)
for i in range(16): I(f"v_cvt_pk_bf16_f32 v{QF+i}, v{OA+2*i}, v{OA+2*i+1}")
for hb in range(2):
    if hb: wvread(1)
    for tt in range(4):
        t = 4*hb + tt
        I(f"s_waitcnt lgkmcnt({min(15, 8*(3-tt))})")
        for s in range(4):
            c = "0" if s == 0 else vr(OA+4*t,4)
            I(f"v_mfma_f32_16x16x32_bf16 {vr(OA+4*t,4)}, {vr(XA+16*tt+4*s,4)}, {vr(QF+4*s,4)}, {c}")
I(f"v_cmp_gt_u32 vcc, {NPB}, v{NODEC}\ns_nop 7")
for i in range(16): I(f"v_cvt_pk_bf16_f32 v{LQ+i}, v{OA+2*i}, v{OA+2*i+1}")
I("s_and_saveexec_b64 s[74:75], vcc")
for u in range(4): I(f"buffer_store_dwordx4 {vr(LQ+4*u,4)}, v{ROWOFF}, s[16:19], 0 offen offset:{16*u}")
if opt["stamps"]: I("s_waitcnt vmcnt(0)")
stamp(13); stamp(14)
stamp_flush((1<<5)|(1<<6)|(1<<7)|(1<<8)|(1<<9)|(1<<10)|(1<<11)|(1<<13), (1<<12)|(1<<14)|(1<<15), None, 0)
I("K2_end:\ns_endpgm")

if opt["extra"]: e(".globl nop_kernel\n.p2align 8\n.type nop_kernel,@function\nnop_kernel:\n    s_endpgm")
if opt["da"] >= 0:
    e(".globl diag_kernel\n.p2align 8\n.type diag_kernel,@function\ndiag_kernel:")
    I("""
s_cmp_lg_u32 s2, 0
s_cbranch_scc1 D_end
s_load_dwordx2 s[4:5], s[0:1], 48
s_waitcnt lgkmcnt(0)
s_sub_u32 s4, s4, 512
s_subb_u32 s5, s5, 0
s_load_dwordx16 s[16:31], s[4:5], 0
s_waitcnt lgkmcnt(0)
s_not_b32 s16, s16
s_not_b32 s31, s31
""")
    def val(k, d):
        if k in (0, 4, 12, 14, 15): I(f"s_sub_u32 s{d}, s{16+k}, s16\ns_lshl_b32 s{d}, s{d}, 8")
        elif k < 5: I(f"s_lshl_b32 s{d}, s16, {LOG1}\ns_sub_u32 s{d}, s{16+k}, s{d}\ns_lshl_b32 s{d}, s{d}, {8-LOG1}")
        else: I(f"s_lshl_b32 s{d}, s16, 8\ns_sub_u32 s{d}, s{16+k}, s{d}")
    val(opt["da"], 6); val(opt["db"], 7)
    I("""
s_sub_u32 s6, s7, s6
s_lshr_b32 s6, s6, 8
s_min_u32 s6, s6, 5000
s_memrealtime s[8:9]
s_waitcnt lgkmcnt(0)
D_loop:
s_memrealtime s[10:11]
s_waitcnt lgkmcnt(0)
s_sub_u32 s10, s10, s8
s_cmp_lt_u32 s10, s6
s_cbranch_scc1 D_loop
D_end:
s_endpgm
""")
e('.section .rodata,"a"')
for nm, nv in (("bin_kernel", 64), (NAME+"_kernel", NV2)) + ((("nop_kernel", 8),) if opt["extra"] else ()) + ((("diag_kernel", 8),) if opt["da"] >= 0 else ()):
    e(f""".p2align 6
.amdhsa_kernel {nm}
  .amdhsa_next_free_vgpr {nv}
  .amdhsa_next_free_sgpr {102 if opt["stamps"] else 96}
  .amdhsa_accum_offset {(nv+3)//4*4}
  .amdhsa_group_segment_fixed_size 0
  .amdhsa_kernarg_size 64
  .amdhsa_user_sgpr_count 2
  .amdhsa_user_sgpr_kernarg_segment_ptr 1
  .amdhsa_system_sgpr_workgroup_id_x 1
.end_amdhsa_kernel""")
open(sys.argv[1], "w").write("\n".join(out) + "\n")
```
